```python
import torch

def _softmax(x, axis=-1):
    return torch.softmax(x, dim=axis)

def _gelu(x):
    return torch.nn.functional.gelu(x, approximate='tanh')

def _silu(x):
    return torch.nn.functional.silu(x)

def _sigmoid(x):
    return torch.sigmoid(x)

def _layernorm(x, axis=-1, eps=1e-05):
    m = x.mean(dim=axis, keepdim=True)
    v = x.var(dim=axis, keepdim=True, unbiased=False)
    return (x - m) / torch.sqrt(v + eps)

def _scatter_add(tgt, idx, src, axis=0):
    return tgt.clone().index_add_(axis, idx, src)

def _segment_sum(src, seg, n):
    out = torch.zeros((n,) + src.shape[1:], dtype=src.dtype)
    return out.index_add_(0, seg, src)

def _pad(x, pw):
    flat = tuple((v for pair in reversed(pw) for v in pair))
    return torch.nn.functional.pad(x, flat)
kernel_name = 'parallel_sum__memory_aug_recurrent_mem_tr__glu_gated_bilinear__prompt'

def setup_inputs():

    _w = lambda a: (lambda t: t.to(torch.bfloat16) if t.is_floating_point() else t)(torch.as_tensor(a))

    def _A_setup():
        B, S, Dm = (1, 2048, 512)
        H, Dh = (32, 128)
        M, seg = (8, 32)
        seg = min(seg, S)
        S = S // seg * seg
        return {'x': _w((lambda *s: torch.randn(*s, dtype=torch.bfloat16) * 0.05)(B, S, Dm)), 'mem0': _w((lambda *s: torch.randn(*s, dtype=torch.bfloat16) * 0.2)(B, M, Dm)), 'Wq': _w((lambda *s: torch.randn(*s, dtype=torch.bfloat16) * 1.6)(Dm, H, Dh) * Dm ** (-0.5)), 'Wk': _w((lambda *s: torch.randn(*s, dtype=torch.bfloat16) * 1.6)(Dm, H, Dh) * Dm ** (-0.5)), 'Wv': _w((lambda *s: torch.randn(*s, dtype=torch.bfloat16) * 0.2)(Dm, H, Dh) * Dm ** (-0.5)), 'Wo': _w((lambda *s: torch.randn(*s, dtype=torch.bfloat16) * 0.2)(H, Dh, Dm) * (H * Dh) ** (-0.5)), 'seg_len': seg}
    _A_in = _A_setup()

    def _B_setup():
        B, S, D, F = (1, 2048, 512, 1376)
        return {'x': _w((lambda *s: torch.randn(*s, dtype=torch.bfloat16) * 0.05)(B, S, D)), 'w_gate': _w((lambda *s: torch.randn(*s, dtype=torch.bfloat16) * 0.2)(D, F) * D ** (-0.5)), 'w_up': _w((lambda *s: torch.randn(*s, dtype=torch.bfloat16) * 0.2)(D, F) * D ** (-0.5)), 'w_down': _w((lambda *s: torch.randn(*s, dtype=torch.bfloat16) * 0.2)(F, D) * F ** (-0.5))}
    _B_in = _B_setup()
    return {'A_x': _A_in['x'], 'A_mem0': _A_in['mem0'], 'A_Wq': _A_in['Wq'], 'A_Wk': _A_in['Wk'], 'A_Wv': _A_in['Wv'], 'A_Wo': _A_in['Wo'], 'A_seg_len': _A_in['seg_len'], 'B_x': _B_in['x'], 'B_w_gate': _B_in['w_gate'], 'B_w_up': _B_in['w_up'], 'B_w_down': _B_in['w_down']}

def reference(A_x, A_mem0, A_Wq, A_Wk, A_Wv, A_Wo, A_seg_len, B_x, B_w_gate, B_w_up, B_w_down):

    def _A_ref(x, mem0, Wq, Wk, Wv, Wo, seg_len):
        B, S, Dm = x.shape
        H, Dh = (Wq.shape[1], Wq.shape[2])
        M = mem0.shape[1]
        scale = Dh ** (-0.5)
        n_seg = S // seg_len
        L = M + seg_len
        idx = torch.arange(L)
        mask = (idx[:, None] < M) | (idx[:, None] >= idx[None, :])
        mem = mem0
        outs = []
        for s in range(n_seg):
            xs = x[:, s * seg_len:(s + 1) * seg_len, :].clone()
            h = torch.concatenate([mem, xs], axis=1)
            q = torch.einsum('btd,dhe->bhte', h, Wq)
            k = torch.einsum('btd,dhe->bhte', h, Wk)
            v = torch.einsum('btd,dhe->bhte', h, Wv)
            scores = torch.einsum('bhqe,bhke->bhqk', q, k) * scale
            scores = torch.where(mask[None, None], scores, -1000000000.0)
            p = _softmax(scores, axis=-1)
            o = torch.einsum('bhqk,bhke->bhqe', p, v)
            o = torch.einsum('bhte,hed->btd', o, Wo)
            mem = o[:, :M, :].clone()
            outs.append(o[:, M:, :])
        return torch.concatenate(outs, axis=1)

    def _B_ref(x, w_gate, w_up, w_down):
        g = torch.einsum('bsd,df->bsf', x, w_gate)
        u = torch.einsum('bsd,df->bsf', x, w_up)
        h = g * u
        return torch.einsum('bsf,fd->bsd', h, w_down)
    x = A_x
    xn = _layernorm(x, axis=-1)
    return x + _A_ref(xn, A_mem0, A_Wq, A_Wk, A_Wv, A_Wo, A_seg_len) + _B_ref(xn, B_w_gate, B_w_up, B_w_down)
```

```python
from h import *
import sys
LOCAL = len(sys.argv) > 1 and sys.argv[1] == "local"
def gen(body, N=100, blk=256):
    name = "mt_kernel"
    s = f"; @launch grid=(1,1,1) block=({blk},1,1) lds=0\n" + HDR.format(name=name)
    s += f"""
  s_load_dwordx2 s[6:7], s[0:1], 8
  v_and_b32 v3, 63, v0
  v_lshlrev_b32 v9, 4, v3
  v_lshlrev_b32 v3, 2, v3
  s_load_dwordx2 s[4:5], s[0:1], 0
  v_mov_b32 v1, 0x4444
  s_waitcnt lgkmcnt(0)
  s_mov_b32 s21, 0
  s_mov_b32 s40, 0
L_loop:
  s_barrier
  s_memtime s[26:27]
  s_waitcnt lgkmcnt(0)
  {body}
  s_memtime s[28:29]
  s_waitcnt lgkmcnt(0)
  s_sub_u32 s28, s28, s26
  s_cmp_lt_u32 s21, 8
  s_cbranch_scc1 L_skip
  s_add_u32 s40, s40, s28
L_skip:
  s_add_u32 s21, s21, 1
  s_cmp_lt_u32 s21, {N+8}
  s_cbranch_scc1 L_loop
  v_mov_b32 v16, s40
  v_mov_b32 v14, 0
  global_store_dword v14, v16, s[6:7]
"""
    s += FTR(name, vgpr=512, accum=256, kernarg=16)
    return s, name
def smf(d, a, b): return f"v_smfmac_f32_16x16x64_bf16 v[{d}:{d+3}], v[{a}:{a+3}], {b}, v1\n"
ag = lambda i: f"a[{i}:{i+7}]"
vg = lambda i: f"v[{i}:{i+7}]"
END = "s_nop 7\n v_mov_b32 v2, v108\n v_mov_b32 v2, v112\n"

def m32(i, side=""): return f"v_mfma_f32_16x16x32_bf16 v[{108+4*(i&1)}:{111+4*(i&1)}], v[20:23], v[{128+4*(i%16)}:{131+4*(i%16)}], v[{108+4*(i&1)}:{111+4*(i&1)}]\n" + side
def m16(i, side=""): return f"v_mfma_f32_16x16x16_bf16 v[{108+4*(i&1)}:{111+4*(i&1)}], v[20:21], v[{128+4*(i%16)}:{129+4*(i%16)}], v[{108+4*(i&1)}:{111+4*(i&1)}]\n" + side
def mb(i, side=""): return f"v_mfma_f32_32x32x16_bf16 v[{64+16*(i&1)}:{79+16*(i&1)}], v[20:23], v[{128+4*(i%16)}:{131+4*(i%16)}], v[{64+16*(i&1)}:{79+16*(i&1)}]\n" + side
def sm(i, side=""): return smf(108+4*(i&1), 20+4*((i>>1)&7), ag(8*(i%24))) + side
mv = lambda k: "".join(f"v_mov_b32 v{56+j}, 0\n" for j in range(k))
T = {
 "empty": "",
 "128 mov_b64": "".join(f"v_mov_b64 v[{60+2*(i&3)}:{61+2*(i&3)}], 0\n" for i in range(128)),
 "128 pk_fma": "".join(f"v_pk_fma_f32 v[{60+2*(i&3)}:{61+2*(i&3)}], v[70:71], v[72:73], v[74:75] op_sel_hi:[1,0,0] neg_lo:[0,0,1] neg_hi:[0,0,1]\n" for i in range(128)),
 "128 max3": "".join(f"v_max3_f32 v{60+(i&7)}, v70, v71, v72\n" for i in range(128)),
 "128 dpp max quad": "".join(f"v_max_f32_dpp v{60+(i&7)}, v70, v71 quad_perm:[2,3,0,1] row_mask:0xf bank_mask:0xf\n" for i in range(128)),
 "32 smf+1 mov64": "".join(sm(i, f"v_mov_b64 v[{60+2*(i&3)}:{61+2*(i&3)}], 0\n") for i in range(32)) + END,
 "32 smf+1 pkadd": "".join(sm(i, f"v_pk_add_f32 v[{60+2*(i&3)}:{61+2*(i&3)}], v[70:71], v[72:73]\n") for i in range(32)) + END,
 "32 smf+1 store": "".join(sm(i, f"global_store_dword v9, v70, s[4:5] offset:{(i&3)*1024}\n") for i in range(32)) + END + "s_waitcnt vmcnt(0)\n",
 "32 smf (store ref)": "".join(sm(i) for i in range(32)) + END + "global_store_dword v9, v70, s[4:5]\n s_waitcnt vmcnt(0)\n",
 "32 mf32+1cvt": "".join(m32(i, f"v_cvt_pk_bf16_f32 v{60+(i&7)}, v70, v71\n") for i in range(32)) + END,
 "32 mf32+2cvt": "".join(m32(i, f"v_cvt_pk_bf16_f32 v{60+(i&7)}, v70, v71\n"*2) for i in range(32)) + END,
 "32 mf16+2cvt": "".join(m16(i, f"v_cvt_pk_bf16_f32 v{60+(i&7)}, v70, v71\n"*2) for i in range(32)) + END,
 "32 mf16": "".join(m16(i) for i in range(32)) + END,
 "wr+wait": "ds_write_b128 v9, v[60:63]\n s_waitcnt lgkmcnt(0)\n",
 "wr2+wait": "ds_write2_b32 v9, v60, v61 offset0:0 offset1:1\n s_waitcnt lgkmcnt(0)\n",
 "wr b64+wait": "ds_write_b64 v9, v[60:61]\n s_waitcnt lgkmcnt(0)\n",
 "wr+wait+bar": "ds_write_b128 v9, v[60:63]\n s_waitcnt lgkmcnt(0)\n s_barrier\n",
 "wr+bar+rd+wait": "ds_write_b128 v9, v[60:63]\n s_waitcnt lgkmcnt(0)\n s_barrier\n ds_read_b128 v[20:23], v9 offset:1024\n s_waitcnt lgkmcnt(0)\n",
 "wr+bar+2rd+wait": "ds_write_b128 v9, v[60:63]\n s_waitcnt lgkmcnt(0)\n s_barrier\n ds_read_b128 v[20:23], v9 offset:1024\n ds_read_b128 v[24:27], v9 offset:2048\n s_waitcnt lgkmcnt(0)\n",
 "wr+bar+8rd(4x128,4x64)+wait": "ds_write_b128 v9, v[60:63]\n s_waitcnt lgkmcnt(0)\n s_barrier\n" + "".join(f"ds_read_b128 v[{20+4*i}:{23+4*i}], v9 offset:{1024*i}\n ds_read_b64 v[{40+2*i}:{41+2*i}], v9 offset:{1024*i+4096}\n" for i in range(4)) + "s_waitcnt lgkmcnt(0)\n",
 "8 ds_add_f32+wait": "".join(f"ds_add_f32 v3, v{60+i} offset:{256*i}\n" for i in range(8)) + "s_waitcnt lgkmcnt(0)\n",
 "6 ds_add_f32+wait": "".join(f"ds_add_f32 v3, v{60+i} offset:{256*i}\n" for i in range(6)) + "s_waitcnt lgkmcnt(0)\n",
 "2 ds_add_f32+wait": "".join(f"ds_add_f32 v3, v{60+i} offset:{256*i}\n" for i in range(2)) + "s_waitcnt lgkmcnt(0)\n",
 "mf32 dep chain 4": "".join(f"v_mfma_f32_16x16x32_bf16 v[108:111], v[20:23], v[128:131], v[108:111]\n" for i in range(4)) + END,
 "mf16,nop7,cvt,nop1,mf32,nop7,cvt": "v_mfma_f32_16x16x16_bf16 v[108:111], v[20:21], v[128:129], 0\n s_nop 7\n v_cvt_pk_bf16_f32 v60, v108, v109\n s_nop 1\n v_mfma_f32_16x16x32_bf16 v[112:115], v[60:63], v[128:131], 0\n s_nop 7\n v_cvt_pk_bf16_f32 v60, v112, v113\n",
}
if LOCAL:
    for nm, b in T.items():
        asm, name = gen(b); build(asm, name, 2, tag="mt")
    print("ok"); sys.exit(0)
ws = cl.DeviceBuffer(1<<21); out = cl.DeviceBuffer(1<<16)
base = None
for nm, b in T.items():
    N = 100
    asm, name = gen(b, N); co = build(asm, name, 2, tag="mt"); k = cl.AsmKernel(co, name)
    memset(out, 0); sync()
    k.launch((1,1,1), (256,1,1), kargs(ws, out), shared_mem=65536); sync()
    v = out.to_numpy(np.uint32, (4,))[0]/N
    if base is None: base = v
    print(f"{nm}: {v-base:.0f}  (raw {v:.0f})")
    k.unload()
```
